```python
import torch

def _softmax(x, axis=-1):
    return torch.softmax(x, dim=axis)
def _gelu(x):
    return torch.nn.functional.gelu(x, approximate="tanh")
def _silu(x):
    return torch.nn.functional.silu(x)
def _sigmoid(x):
    return torch.sigmoid(x)
def _layernorm(x, axis=-1, eps=1e-5):
    m = x.mean(dim=axis, keepdim=True)
    v = x.var(dim=axis, keepdim=True, unbiased=False)
    return (x - m) / torch.sqrt(v + eps)
def _scatter_add(tgt, idx, src, axis=0):
    return tgt.clone().index_add_(axis, idx, src)
def _segment_sum(src, seg, n):
    out = torch.zeros((n,) + src.shape[1:], dtype=src.dtype)
    return out.index_add_(0, seg, src)
def _pad(x, pw):
    flat = tuple(v for pair in reversed(pw) for v in pair)
    return torch.nn.functional.pad(x, flat)

kernel_name = 'standalone__gqa_softmax__near_ridge'

def setup_inputs():

    _w = (lambda a: (lambda t: t.to(torch.bfloat16) if t.is_floating_point() else t)(torch.as_tensor(a)))
    B, Hq, Hkv, Sq, Sk, D = 32, 32, 8, 384, 384, 128
    return {
        "q": _w((lambda *s: torch.randn(*s, dtype=torch.bfloat16) * 0.8)(B, Hq, Sq, D)),
        "k": _w((lambda *s: torch.randn(*s, dtype=torch.bfloat16) * 0.8)(B, Hkv, Sk, D)),
        "v": _w((lambda *s: torch.randn(*s, dtype=torch.bfloat16) * 0.05)(B, Hkv, Sk, D)),
    }

def reference(q, k, v):
    B, Hq, Sq, D = q.shape
    Hkv = k.shape[1]
    rep = Hq // Hkv
    k = (lambda x, n, axis: torch.repeat_interleave(x, n, dim=axis))(k, rep, axis=1)
    v = (lambda x, n, axis: torch.repeat_interleave(x, n, dim=axis))(v, rep, axis=1)
    scale = D ** -0.5
    scores = torch.einsum("bhqd,bhkd->bhqk", q, k) * scale
    p = _softmax(scores, axis=-1)
    return torch.einsum("bhqk,bhkd->bhqd", p, v)
```

```python
KN = "standalone__gqa_softmax__near_ridge_kernel"
QB = 100663296
KVB = 25165824
WSB = 402653184

def header(grid, block, lds):
    return f"""; @launch grid=({grid},1,1) block=({block},1,1) lds={lds}
.amdgcn_target "amdgcn-amd-amdhsa--gfx950"
.text
.globl {KN}
.p2align 8
.type {KN},@function
{KN}:
"""

def footer(vgpr=512, accum=256, sgpr=102):
    return f"""
.section .rodata,"a"
.p2align 6
.amdhsa_kernel {KN}
  .amdhsa_next_free_vgpr {vgpr}
  .amdhsa_next_free_sgpr {sgpr}
  .amdhsa_accum_offset {accum}
  .amdhsa_group_segment_fixed_size 0
  .amdhsa_kernarg_size 48
  .amdhsa_user_sgpr_count 2
  .amdhsa_user_sgpr_kernarg_segment_ptr 1
  .amdhsa_system_sgpr_workgroup_id_x 1
.end_amdhsa_kernel
"""

def srd(dst, ptr, nbytes):
    return f"""  s_mov_b32 s{dst}, s{ptr}
  s_and_b32 s{dst+1}, s{ptr+1}, 0xffff
  s_mov_b32 s{dst+2}, {nbytes}
  s_mov_b32 s{dst+3}, 0x20000
"""
```

```python
import re

def R(kind, lo, n=1):
    return [f"{kind}{i}" for i in range(lo, lo + n)]

def rng(kind, lo, n):
    return f"{kind}{lo}" if n == 1 else f"{kind}[{lo}:{lo+n-1}]"

class Reg:
    def __init__(s, k, lo, n=1): s.k, s.lo, s.n = k, lo, n
    def __str__(s): return rng(s.k, s.lo, s.n)
    def regs(s): return R(s.k, s.lo, s.n)
    def __getitem__(s, i):
        if isinstance(i, slice):
            a = i.start or 0; b = i.stop if i.stop is not None else s.n
            assert 0 <= a < b <= s.n, (a, b, s.n)
            return Reg(s.k, s.lo + a, b - a)
        assert 0 <= i < s.n
        return Reg(s.k, s.lo + i, 1)
def V(lo, n=1): return Reg('v', lo, n)
def A(lo, n=1): return Reg('a', lo, n)
def S(lo, n=1): return Reg('s', lo, n)

def regs_of(x):
    if isinstance(x, Reg): return x.regs()
    if isinstance(x, str):
        x2 = x.lstrip('-')
        if x2 in ('vcc', 'exec', 'm0', 'scc'): return [x2]
        m = re.fullmatch(r'([vas])(\d+)', x2)
        if m: return [x2]
        m = re.fullmatch(r'([vas])\[(\d+):(\d+)\]', x2)
        if m: return R(m.group(1), int(m.group(2)), int(m.group(3)) - int(m.group(2)) + 1)
    return []

class Ins:
    __slots__ = ('text', 'kind', 'rd', 'wr', 'cost', 'srcc', 'tag', 'passes')
    def __init__(s, text, kind, rd=(), wr=(), cost=4, srcc=(), tag=None, passes=0):
        s.text, s.kind, s.rd, s.wr, s.cost, s.srcc, s.tag, s.passes = text, kind, set(rd), set(wr), cost, set(srcc), tag, passes
    def __repr__(s): return s.text

def _flat(xs):
    o = []
    for x in xs: o += regs_of(x)
    return o

def mfma(d, a, b, c, op="v_mfma_f32_32x32x16_bf16", passes=8):
    return Ins(f"{op} {d}, {a}, {b}, {c}", 'mfma', _flat([a, b, c]), _flat([d]), 8, srcc=_flat([c]), passes=passes)
TRANS = ('v_exp_f32', 'v_rcp_f32', 'v_log_f32', 'v_rsq_f32', 'v_sqrt_f32')
def valu(op, d, *src, extra="", rmw=False):
    k = 'trans' if op in TRANS else 'valu'
    rd = _flat(src) + (_flat([d]) if rmw else [])
    t = f"{op} {d}, " + ", ".join(str(x) for x in src) + (" " + extra if extra else "")
    return Ins(t, k, rd, _flat([d]), 8 if k == 'trans' else 4)
def swap(op, a, b):
    return Ins(f"{op} {a}, {b}", 'perm', _flat([a, b]), _flat([a, b]), 4)
def vcmp(op, d, a, b):
    return Ins(f"{op} {d}, {a}, {b}", 'valu', _flat([a, b]), _flat([d]), 4)
def salu(op, d, *src, scc=True, rdscc=False):
    t = f"{op} " + ", ".join(str(x) for x in ((d,) if d is not None else ()) + src)
    return Ins(t, 'salu', _flat(src) + (['scc'] if rdscc else []), (_flat([d]) if d is not None else []) + (['scc'] if scc else []), 4)
def dsread(op, d, addr, off=0):
    return Ins(f"{op} {d}, {addr} offset:{off}", 'dsr', _flat([addr]), _flat([d]), 4)
def dswrite(op, addr, data, off=0):
    return Ins(f"{op} {addr}, {data} offset:{off}", 'dsw', _flat([addr, data]), [], 4)
def bload(op, d, voff, srd, soff, off=0, pol=""):
    return Ins(f"{op} {d}, {voff}, {srd}, {soff} offen offset:{off} {pol}".rstrip(), 'vml', _flat([voff, srd, soff]), _flat([d]), 4)
def bdma(voff, srd, soff, off=0, pol=""):
    return Ins(f"buffer_load_dwordx4 {voff}, {srd}, {soff} offen offset:{off} {pol} lds".replace("  ", " "), 'dma', _flat([voff, srd, soff]) + ['m0'], [], 4)
def bstore(op, data, voff, srd, soff, off=0, pol=""):
    return Ins(f"{op} {data}, {voff}, {srd}, {soff} offen offset:{off} {pol}".rstrip(), 'vms', _flat([data, voff, srd, soff]), [], 4)
def raw(text, kind='misc', rd=(), wr=(), cost=4):
    return Ins(text, kind, _flat(rd), _flat(wr), cost)
def label(name): return Ins(name + ":", 'label', cost=0)
def comment(t): return Ins("; " + t, 'label', cost=0)
def waitall(): return Ins("s_waitcnt vmcnt(0) lgkmcnt(0)", 'waitall')
def wait_vm(n): return Ins(f"s_waitcnt vmcnt({n})", 'waitvm', tag=n)
def wait_lgkm(n): return Ins(f"s_waitcnt lgkmcnt({n})", 'waitlgkm', tag=n)
def barrier(): return Ins("s_barrier", 'misc')

ISVALU = ('valu', 'trans', 'perm')
ISVMEM = ('vml', 'vms', 'dma')

class State:
    def __init__(s):
        s.lg = []
        s.vm = []
        s.hist = []
        s.n = 0
        s.t = 0
        s.mfma_free = 0
    def copy(s):
        o = State(); o.lg = list(s.lg); o.vm = list(s.vm); o.hist = list(s.hist); o.n = s.n; o.t = s.t; o.mfma_free = s.mfma_free
        return o

def need_states(prev, cur):
    n = 0
    pw, cr, cw = prev.wr, cur.rd, cur.wr
    if prev.kind in ISVALU:
        vw = {r for r in pw if r[0] in 'va' and r != 'vcc'}
        sw = pw - vw
        if cur.kind == 'mfma' and vw & cr: n = max(n, 2)
        if cur.kind == 'perm' and vw & cr: n = max(n, 2)
        if prev.kind == 'trans' and cur.kind in ('valu', 'perm') and vw & cr: n = max(n, 1)
        if 'readfirstlane' in cur.text or 'readlane' in cur.text:
            if vw & cr: n = max(n, 1)
        if '_dpp' in cur.text and vw & cr: n = max(n, 2)
        if sw:
            if cur.kind in ISVMEM and sw & cr: n = max(n, 5)
            if cur.kind in ISVALU and sw & cr: n = max(n, 2)
            if cur.kind == 'salu' and sw & cr: n = max(n, 1)
    if prev.kind == 'mfma':
        big = {2: 5, 4: 8, 8: 12, 16: 20}[prev.passes]
        if cur.kind == 'mfma':
            ab = cur.rd - cur.srcc
            if pw & ab: n = max(n, big)
            if pw & cur.srcc and not (pw == cur.srcc and prev.passes == cur.passes): n = max(n, big - 2)
            if pw & cur.wr and not (pw == cur.wr): n = max(n, big - 2)
        elif cur.kind in ISVALU or cur.kind in ISVMEM or cur.kind in ('dsr', 'dsw'):
            if pw & (cr | cw): n = max(n, big)
            if cur.kind in ISVALU and prev.srcc & cw: n = max(n, {2: 1, 4: 3, 8: 7, 16: 15}[prev.passes])
    if prev.kind == 'salu' and 'm0' in pw and cur.kind == 'dma': n = max(n, 1)
    if prev.kind == 'vms' and ('x4' in prev.text or 'x3' in prev.text):
        if {r for r in prev.rd if r[0] in 'va'} & cw: n = max(n, 2)
    return n

def process(seq, st=None, eager=160, strict=False):
    st = st or State()
    out = []
    def emit(ins, states=1):
        if ins.kind == 'mfma':
            start = max(st.t, st.mfma_free)
            if not strict: st.n += (start - st.t) // 4 if False else 0
            st.mfma_free = start + ins.passes * 4
            tissue = start
            st.t = start + 8
        else:
            tissue = st.t
            st.t += ins.cost if states == 1 else 4 * states
        if ins.kind != 'label':
            st.hist.append((ins, st.n, tissue))
            st.n += states
            if len(st.hist) > 40: st.hist.pop(0)
        out.append(ins)
    for ins in seq:
        if ins.kind == 'label': out.append(ins); continue
        if ins.kind == 'waitall': st.lg = []; st.vm = []; emit(ins); continue
        if ins.kind == 'waitvm': st.vm = st.vm[len(st.vm) - ins.tag:] if ins.tag and len(st.vm) > ins.tag else ([] if not ins.tag else st.vm); emit(ins); continue
        if ins.kind == 'waitlgkm': st.lg = st.lg[len(st.lg) - ins.tag:] if ins.tag and len(st.lg) > ins.tag else ([] if not ins.tag else st.lg); emit(ins); continue
        touched = ins.rd | ins.wr
        w = []
        for q, nm, mx, eg in ((st.lg, 'lgkmcnt', 15, eager), (st.vm, 'vmcnt', 63, None)):
            idx = -1
            for i, (d, t) in enumerate(q):
                if d & touched: idx = i
            if idx >= 0:
                if eg is not None:
                    while idx + 1 < len(q) and st.t - q[idx + 1][1] >= eg: idx += 1
                n = len(q) - 1 - idx
                n = min(n, mx)
                del q[:len(q) - n]
                w.append(f"{nm}({n})")
        if w: emit(Ins("s_waitcnt " + " ".join(w), 'wait'))
        need = 0
        for (p, pn, pt) in st.hist:
            k = need_states(p, ins)
            if k:
                have = st.n - pn - 1
                if p.kind == 'mfma' and not strict:
                    later = [(q, qn) for (q, qn, qt) in st.hist if q.kind == 'mfma' and qn > pn]
                    if later:
                        acc = p.passes
                        for (q, qn) in later[:-1]: acc += q.passes
                        alt = acc - 1 + (st.n - later[-1][1])
                        have = max(have, alt - 1)
                    if ins.kind == 'mfma':
                        acc = p.passes + sum(q.passes for (q, qn) in later)
                        have = max(have, acc - 2)
                need = max(need, k - have)
        while need > 0:
            k = min(need, 16)
            emit(Ins(f"s_nop {k-1}", 'nop'), states=k)
            need -= k
        if ins.kind in ('dsr', 'dsw'):
            if len(st.lg) >= 15:
                emit(Ins("s_waitcnt lgkmcnt(14)", 'wait')); del st.lg[:len(st.lg) - 14]
            st.lg.append((set(ins.wr), st.t))
        if ins.kind in ISVMEM:
            if len(st.vm) >= 63:
                emit(Ins("s_waitcnt vmcnt(62)", 'wait')); del st.vm[:len(st.vm) - 62]
            st.vm.append((set(ins.wr), st.t))
        emit(ins)
    return out, st

def render(seq):
    return "".join((i.text if i.kind == 'label' else "  " + i.text) + "\n" for i in seq)
```

```python
from sched import (Reg, V, A, S, regs_of, Ins, _flat, TRANS, valu, swap, vcmp, salu, label, comment,
                   raw, render, ISVALU, ISVMEM, need_states)

def mfma16(d, a, b, c):
    return Ins(f"v_mfma_f32_16x16x32_bf16 {d}, {a}, {b}, {c}", 'mfma', _flat([a, b, c]), _flat([d]), 4, srcc=_flat([c]), passes=4)
def dsread(op, d, addr, off=0, vr=(), offs=None):
    o = f"offset:{off}" if offs is None else f"offset0:{offs[0]} offset1:{offs[1]}"
    return Ins(f"{op} {d}, {addr} {o}", 'dsr', _flat([addr]) + list(vr), _flat([d]), 8)
def dswrite(op, addr, data, off=0, vw=()):
    return Ins(f"{op} {addr}, {data} offset:{off}", 'dsw', _flat([addr, data]), list(vw), 12)
def bload(op, d, voff, srd, soff, off=0, pol=""):
    return Ins(f"{op} {d}, {voff}, {srd}, {soff} offen offset:{off} {pol}".rstrip(), 'vml', _flat([voff, srd, soff]), _flat([d]), 12)
def bdma(voff, srd, soff, off=0, pol="", vw=()):
    return Ins(f"buffer_load_dwordx4 {voff}, {srd}, {soff} offen offset:{off} {pol} lds".replace("  ", " "), 'dma', _flat([voff, srd, soff]) + ['m0'], list(vw), 12)
def bstore(op, data, voff, srd, soff, off=0, pol=""):
    return Ins(f"{op} {data}, {voff}, {srd}, {soff} offen offset:{off} {pol}".rstrip(), 'vms', _flat([data, voff, srd, soff]), [], 12)
def need(*regs):
    r = []
    for x in regs: r += regs_of(x) or [x]
    return Ins("; need", 'need', r, [], 4)
def barrier(vr=()): return Ins("s_barrier", 'bar', list(vr), [], 4)
def waitall(): return Ins("s_waitcnt vmcnt(0) lgkmcnt(0)", 'waitall')

class State:
    def __init__(s):
        s.lg = []; s.vm = []; s.hist = []; s.n = 0; s.t = 0; s.mfma_free = 0; s.valu_free = 0
    def copy(s):
        o = State(); o.__dict__.update(s.__dict__); o.lg = list(s.lg); o.vm = list(s.vm); o.hist = list(s.hist)
        return o

def process(seq, st=None, strict=False, log=None):
    st = st or State()
    out = []
    def emit(ins, states=1):
        if ins.kind == 'mfma':
            start = max(st.t, st.mfma_free, st.valu_free)
            st.mfma_free = start + ins.passes * 4
            st.valu_free = start + 8
            st.t = start + 4
        elif ins.kind in ISVALU:
            start = max(st.t, st.valu_free)
            st.t = start + ins.cost
        else:
            st.t += ins.cost if states == 1 else 4 * states
        st.hist.append((ins, st.n))
        st.n += states
        if len(st.hist) > 40: st.hist.pop(0)
        out.append(ins)
    for ins in seq:
        if ins.kind == 'label': out.append(ins); continue
        if ins.kind == 'waitall': st.lg = []; st.vm = []; emit(ins); continue
        touched = ins.rd | {r for r in ins.wr if r[0] in 'vas'}
        w = []
        for q, nm, mx in ((st.lg, 'lgkmcnt', 15), (st.vm, 'vmcnt', 63)):
            idx = -1
            for i, d in enumerate(q):
                if d & touched: idx = i
            if idx >= 0:
                n = min(len(q) - 1 - idx, mx)
                del q[:len(q) - n]
                w.append(f"{nm}({n})")
        if w:
            emit(Ins("s_waitcnt " + " ".join(w), 'wait'))
            if ins.kind != 'need' and log is not None: log.append(f"late wait {w} before {ins.text}")
        if ins.kind == 'need': continue
        nd = 0
        for (p, pn) in st.hist:
            k = need_states(p, ins)
            if k:
                have = st.n - pn - 1
                if p.kind == 'mfma' and not strict:
                    later = [(q, qn) for (q, qn) in st.hist if q.kind == 'mfma' and qn > pn]
                    if later:
                        acc = p.passes + sum(q.passes for (q, qn) in later[:-1])
                        have = max(have, acc - 1 + (st.n - later[-1][1]) - 1)
                    if ins.kind == 'mfma':
                        have = max(have, p.passes + sum(q.passes for (q, qn) in later) - 2)
                nd = max(nd, k - have)
        if nd > 0 and log is not None: log.append(f"nop {nd} before {ins.text}")
        while nd > 0:
            k = min(nd, 16)
            emit(Ins(f"s_nop {k-1}", 'nop'), states=k)
            nd -= k
        if ins.kind in ('dsr', 'dsw'):
            if len(st.lg) >= 15:
                emit(Ins("s_waitcnt lgkmcnt(14)", 'wait')); del st.lg[:len(st.lg) - 14]
            st.lg.append(set(ins.wr))
        if ins.kind in ISVMEM:
            if len(st.vm) >= 63:
                emit(Ins("s_waitcnt vmcnt(62)", 'wait')); del st.vm[:len(st.vm) - 62]
            st.vm.append(set(ins.wr))
        emit(ins)
    return out, st

class Slots:
    def __init__(s, n, wrap=True):
        s.n = n; s.wrap = wrap
        s.mf = [None] * n; s.nv = [[] for _ in range(n)]; s.va = [[] for _ in range(n)]
    def idx(s, g): return g % s.n if s.wrap else g
    def time(s, g, extra=None):
        g = s.idx(g)
        nv = sum(i.cost for i in s.nv[g]); va = sum(i.cost for i in s.va[g])
        if extra is not None:
            if extra.kind in ISVALU: va += extra.cost
            else: nv += extra.cost
        return 4 + max(4, nv) + va if va else 4 + nv
    def put(s, g, ins):
        if s.wrap and g >= s.n: ins.tag = 'prev'
        g = s.idx(g)
        (s.va if ins.kind in ISVALU else s.nv)[g].append(ins)
    def putm(s, g, ins):
        if s.wrap and g >= s.n: ins.tag = 'prev'
        assert s.mf[s.idx(g)] is None
        s.mf[s.idx(g)] = ins
    def fill(s, start, seq, deadline=None, budget=16):
        g = start; lastv = -1
        items = []
        for x in seq:
            if not isinstance(x, tuple): x = (x, None, None)
            if len(x) == 2: x = (x[0], x[1], None)
            items.append(x)
        for ins, e, l in items:
            if isinstance(ins, int): g += ins; continue
            if e is not None: g = max(g, e)
            isv = ins.kind in ISVALU
            if not isv and lastv >= g: g = lastv + 1
            lim = min(x for x in (deadline, l, 10 ** 9 if s.wrap else s.n - 1) if x is not None)
            g = min(g, lim)
            while s.time(g, ins) > budget and g < lim: g += 1
            s.put(g, ins)
            if isv: lastv = g
        return g
    def spread(s, start, end, seq):
        import copy
        for budget in range(16, 200, 4):
            t = copy.copy(s); t.nv = [list(x) for x in s.nv]; t.va = [list(x) for x in s.va]
            g = t.fill(start, seq, budget=budget)
            if g <= end:
                s.nv, s.va = t.nv, t.va
                return g
        raise RuntimeError("cannot spread")
    def linear(s, keep=lambda i: True, period=None):
        o = []
        for g in range(s.n):
            if period and g % period == 0: o.append(comment(f"---- period {g // period}"))
            for i in ([s.mf[g]] if s.mf[g] is not None else []) + s.nv[g] + s.va[g]:
                if keep(i): o.append(i)
        return o
```

```python
import sys, struct, math
from asmlib import *
from sched2 import *

def f2u(x): return struct.unpack('<I', struct.pack('<f', x))[0]

sSRDQ, sSRDK, sSRDV, sSRDO = S(16, 4), S(20, 4), S(24, 4), S(28, 4)
sW, sC, sQ, sO, sFAIL, sBIT, sPASS, sSELLO, sSELHI, sRLO, sRHI = (S(i) for i in range(32, 43))
sT0, sT1, sKL, sKG, sVL, sVG, sQBASE = (S(i) for i in range(43, 50))
sM1 = S(50, 2)
vK0, vK1, vV, vQ, vO = V(1), V(2), V(3), V(4), V(5)
vMAX, vMIN = V(6), V(7)
vONE = V(8, 4)
vKD, vKP = V(12), V(13)
vVW, vVR, vKP2 = V(6), V(7), V(5)
TT = V(14, 10)
def vSl(x): return V(24 + 4 * x, 4)
def vSh(x): return V(40 + 4 * (x & 1), 4)
def vSe(x, e): return vSl(x)[e] if e < 4 else vSh(x)[e - 4]
def vL(x): return V(48 + 4 * x, 4)
def vOa(x, t): return V(64 + 32 * x + 4 * t, 4)
def vQn(x, s): return V(192 + 16 * x + 4 * s, 4)
def aQ(x, s): return A(128 + 16 * x + 4 * s, 4)
def aK(f): return A(192 + 4 * f, 4)
def aVs(t): return A(224 + 4 * t, 4)
def vfrag(j, t): return A((j * 8 + t) * 4, 4) if j < 4 else aVs(t)
LDS_V = 98304
PER = 68
NS = 12 * PER
def vslot(j): return j % 8

class Cfg:
    qpol = "nt"; kvpol = "nt"; opol = ""
    strict = False; stamp = False; D = 4; sparse1 = True; pstart = 20; ends = (79, 106, 133, 159)

def kread(j, f, vr=()):
    base, off = (vK0, j * 8192) if j < 8 else (vK1, (j - 8) * 8192)
    return dsread("ds_read_b128", aK(f), base, off + f * 256)
def vread(j, t):
    return dsread("ds_read_b128", vfrag(j, t), vV, vslot(j) * 8192 + t * 256)

QK0 = {0: 0, 1: 8, 2: 34, 3: 42}
PV0 = {0: 50, 1: 59, 2: 84, 3: 93}
EX0 = {0: 6, 1: 22, 2: 40, 3: 56}

def base(T, first_pass):
    for p in range(12):
        o = p * PER
        for x in range(4):
            for ks in range(2):
                for s in range(4):
                    d = vSh(x) if ks else vSl(x)
                    T.putm(o + QK0[x] + 4 * ks + s, mfma16(d, aK(4 * ks + s), aQ(x, s), 0 if s == 0 else d))
            P = vSl(x)
            T.putm(o + PV0[x], mfma16(vL(x), P, vONE, 0 if p == 0 else vL(x)))
            order = [4, 5, 6, 7, 0, 1, 2, 3] if p == 0 else list(range(8))
            for n, t in enumerate(order):
                T.putm(o + PV0[x] + 1 + n, mfma16(vOa(x, t), P, vfrag(p, t), 0 if p == 0 else vOa(x, t)))
            for e in range(8):
                T.put(o + EX0[x] + 2 * e, valu("v_exp_f32", vSe(x, e), vSe(x, e)))
            for i in range(4):
                T.put(o + EX0[x] + 4 * i + 3, valu("v_cvt_pk_bf16_f32", vSe(x, i), vSe(x, 2 * i), vSe(x, 2 * i + 1)))
        if first_pass:
            for t in range(8): T.put(o + 37 + t, vread(p, t))
            T.put(o + 49, need(*[vfrag(p, t) for t in range(8)]))
            for f in range(8): T.put(o + 45 + 2 * f + (f > 1), kread((p + 1) % 12, f))
        else:
            if p >= 4:
                for t in range(8): T.put(o + 27 + 2 * t, vread(p, t))
                T.put(o + 48, need(*[vfrag(p, t) for t in range(8)]))
            for f in range(8): T.put(o + 43 + 2 * f, kread((p + 1) % 12, f))
        T.put(o + 66, need(*[aK(f) for f in range(8)]))

def q_loads(cfg, x, dst):
    return [bload("buffer_load_dwordx4", dst(x, s), vQ, sSRDQ, sQ, 64 * s, cfg.qpol) for s in range(4)] + [salu("s_add_u32", sQ, sQ, 4096)]

def epilogue(cfg, x):
    L = vL(x)
    s = []
    for r in range(4):
        if cfg.sparse1:
            i = valu("v_rcp_f32", L[r], L[r]); i.text = f"v_rcp_f32_dpp {L[r]}, {L[r]} row_newbcast:0 row_mask:0xf bank_mask:0xf"
            s.append(i)
        else: s.append(valu("v_rcp_f32", L[r], L[r]))
    chk = []
    if x == 0:
        chk += [valu("v_max3_u32", vMAX, L[0], L[1], L[2]), valu("v_min3_u32", vMIN, L[0], L[1], L[2]),
                valu("v_max_u32", vMAX, vMAX, L[3]), valu("v_min_u32", vMIN, vMIN, L[3])]
    else:
        chk += [valu("v_max3_u32", vMAX, vMAX, L[0], L[1]), valu("v_min3_u32", vMIN, vMIN, L[0], L[1]),
                valu("v_max3_u32", vMAX, vMAX, L[2], L[3]), valu("v_min3_u32", vMIN, vMIN, L[2], L[3])]
    s += chk
    O = lambda t, r: vOa(x, t)[r]
    done = set()
    body = []
    order = [(0, 0), (1, 0), (0, 1), (2, 0), (3, 0), (1, 1), (2, 1), (3, 1)] + [(r, i) for r in range(4) for i in (2, 3)]
    def muls(r, i): return [valu("v_mul_f32", O(t, r), O(t, r), L[r]) for t in (2 * i, 2 * i + 1)]
    body += muls(*order[0])
    for k, (r, i) in enumerate(order):
        if k + 1 < len(order): body += muls(*order[k + 1])
        body.append(valu("v_cvt_pk_bf16_f32", O(r, i), O(2 * i, r), O(2 * i + 1, r)))
        if i == 3:
            body.append(bstore("buffer_store_dwordx4", vOa(x, r), vO, sSRDO, sO, 256 * r, cfg.opol))
    body.append(salu("s_add_u32", sO, sO, 4096))
    return s, body

def check_ops():
    return [vcmp("v_cmp_lt_u32", "vcc", sRHI, vMAX), vcmp("v_cmp_gt_u32", sM1, sRLO, vMIN),
            salu("s_or_b64", "vcc", "vcc", sM1), salu("s_cselect_b32", sT0, sBIT, 0, scc=False, rdscc=True),
            salu("s_or_b32", sFAIL, sFAIL, sT0), salu("s_lshl_b32", sBIT, sBIT, 1)]

def boundary(cfg, T, first_pass):
    P11 = 11 * PER
    g = 0
    wins = []
    for x in range(4):
        head, body = epilogue(cfg, x)
        st = P11 + PV0[x]
        seq = [(head[0], st + 2)] + head[1:] + [(body[0], st + 5)] + body[1:]
        seq2 = []
        for it in seq:
            ins, e = it if isinstance(it, tuple) else (it, None)
            if ins.text.startswith("v_mul"):
                reg = int(ins.text.split()[1][1:-1]); t = (reg - 64 - 32 * x) // 4
                e = max(e or 0, st + 1 + t + 2)
            seq2.append((ins, e))
        wins.append((st + 2, NS + PV0[x] - 1, seq2))
    ends = cfg.ends
    g = 0
    for x, (a, b, seq) in enumerate(wins):
        g = T.spread(max(g, a), min(b, P11 + ends[x]), seq)
    print(f"; epilogue ends at {g - NS}", file=sys.stderr)
    g = T.fill(g, check_ops())
    for x in range(4):
        seq = [(need(*[vQn(x, s) for s in range(4)]), P11 + QK0[x] + 3)]
        for s in range(4):
            seq += [(valu("v_accvgpr_write_b32", aQ(x, s)[i], vQn(x, s)[i]), P11 + QK0[x] + 4 + s) for i in range(4)]
        T.spread(P11 + QK0[x] + 3, NS + QK0[x] - 2, seq)
        for it in seq:
            if it[0].tag == 'prev': it[0].tag = 'prevq'
    if not first_pass:
        pre = [salu("s_cmp_ge_u32", None, sPASS, 5), salu("s_cselect_b32", sSRDQ[2], 0, sSRDQ[2], scc=False, rdscc=True)]
        T.fill(3 * PER, pre)
        for x in range(4):
            T.fill((3 + x) * PER + 5, q_loads(cfg, x, vQn))

def dma_k(cfg, j):
    return [salu("s_add_u32", "m0", sKL, j * 8192), salu("s_add_u32", sT1, sKG, j * 8192)] + \
           [bdma(vKD, sSRDK, sT1, z * 1024, cfg.kvpol, vw=[f"DK{j}"]) for z in range(2)]
def dma_v(cfg, j):
    return [salu("s_add_u32", "m0", sVL, vslot(j) * 8192), salu("s_add_u32", sT1, sKG, j * 8192)] + \
           [bdma(vKP, sSRDV, sT1, z * 1024, cfg.kvpol, vw=[f"DV{j}"]) for z in range(2)]
def proc_k(j, gap=6):
    base, off = (vKP, j * 8192) if j < 8 else (vKP2, (j - 8) * 8192)
    TK, TK1, TK2 = TT[2:10], TT[0], TT[1]
    o = [need(f"DK{j}")] + [dsread("ds_read_b128", TK[4 * z:4 * z + 4], base, off + z * 1024) for z in range(2)]
    if gap: o.append(gap)
    o.append(need(TK))
    for z in range(2):
        for i in range(4):
            xx = TK[4 * z + i]
            o += [valu("v_lshlrev_b32", TK1, 16, xx), valu("v_and_b32", TK2, "0xffff0000", xx),
                  valu("v_mul_f32", TK1, sC, TK1), valu("v_mul_f32", TK2, sC, TK2),
                  valu("v_cvt_pk_bf16_f32", xx, TK1, TK2)]
        o.append(dswrite("ds_write_b128", base, TK[4 * z:4 * z + 4], off + z * 1024, vw=[f"WK{j}"]))
    return o
def proc_v(j, gap=6):
    o64 = vslot(j) * 32
    Rr = TT[2:10]
    o = [need(f"DV{j}")]
    for k, (ra, rb) in enumerate(((0, 2), (4, 6), (1, 3), (5, 7))):
        o.append(dsread("ds_read2st64_b32", Rr[2 * k:2 * k + 2], vVR, offs=(o64 + ra, o64 + rb)))
    if gap: o.append(gap)
    o.append(need(Rr))
    for i in range(4):
        o.append(valu("v_perm_b32", TT[i], Rr[4 + i], Rr[i], sSELLO))
        o.append(valu("v_perm_b32", Rr[4 + i], Rr[4 + i], Rr[i], sSELHI))
    o.append(dswrite("ds_write_b128", vVW, TT[0:4], vslot(j) * 8192, vw=[f"WV{j}"]))
    o.append(dswrite("ds_write_b128", vVW, Rr[4:8], vslot(j) * 8192 + 256, vw=[f"WV{j}"]))
    return o

def loader(cfg, T):
    D = cfg.D
    qx = 0
    for p in range(12):
        o = p * PER
        seq = proc_v(p) + (proc_k(p + 1) if p + 1 < 12 else [])
        start = o - cfg.pstart if p > 0 else 0
        if p == 11: start = o + 10
        T.spread(start, o + 33, seq)
        T.put(o + 35, need(f"WV{p}", f"WK{p+1}"))
        T.put(o + 36, barrier())
        seq = []
        if p + D < 12: seq += dma_v(cfg, p + D)
        if p + D + 1 < 12: seq += dma_k(cfg, p + D + 1)
        if p + D >= 11 and qx < 4:
            seq += q_loads(cfg, qx, vQn); qx += 1
            if p + D >= 12 and qx < 4: seq += q_loads(cfg, qx, vQn); qx += 1
        if p == 11:
            seq = [valu("v_lshrrev_b32", TT[0], 1, vV), valu("v_and_b32", TT[0], "0xc00", TT[0]),
                   valu("v_and_b32", vO, "0xf0", vV), valu("v_or_b32", vO, vO, TT[0])]
        if seq: T.spread(o + 37, o + 47, seq)
    assert qx == 4

def prologue(cfg):
    c = math.log2(math.e) / math.sqrt(128.0)
    lane, t1, t2, t3 = V(30), V(31), V(32), V(33)
    o = [raw("s_cmp_ge_u32 s2, 256"), raw("s_cbranch_scc1 L_end"),
         raw("s_load_dwordx4 s[4:7], s[0:1], 0"), raw("s_load_dwordx4 s[8:11], s[0:1], 16"),
         valu("v_lshrrev_b32", t1, 6, V(0)),
         valu("v_and_b32", lane, 63, V(0)),
         Ins(f"v_readfirstlane_b32 s32, {t1}", 'valu', t1.regs(), ['s32']),
         valu("v_and_b32", t2, 3, lane), valu("v_lshrrev_b32", t3, 2, lane),
         valu("v_lshlrev_b32", vKD, 11, t1), valu("v_lshl_add_u32", vKP, lane, 4, vKD),
         valu("v_lshl_add_u32", vKD, t2, 8, vKD),
         valu("v_and_b32", t1, 1, t1), valu("v_lshlrev_b32", t1, 1, t1), valu("v_xor_b32", t3, t3, t1),
         valu("v_lshl_add_u32", vKD, t3, 4, vKD),
         salu("s_mul_i32", sKG, S(2), 98304, scc=False),
         salu("s_lshl_b32", sKL, sW, 11), salu("s_add_u32", sVL, sKL, LDS_V),
         salu("s_mul_i32", sQ, S(2), 393216, scc=False), salu("s_mul_i32", sT0, sW, 98304, scc=False),
         salu("s_add_u32", sQ, sQ, sT0), salu("s_mov_b32", sO, sQ, scc=False), salu("s_mov_b32", sQBASE, sQ, scc=False),
         valu("v_and_b32", t1, 15, lane), valu("v_lshrrev_b32", t3, 4, lane),
         valu("v_lshlrev_b32", vQ, 8, t1), valu("v_lshl_add_u32", vQ, t3, 4, vQ),
         raw("s_waitcnt lgkmcnt(0)")]
    def mk(d, p, n):
        return [salu("s_mov_b32", S(d), S(p), scc=False), salu("s_and_b32", S(d + 1), S(p + 1), "0xffff"),
                salu("s_mov_b32", S(d + 2), n, scc=False), salu("s_mov_b32", S(d + 3), "0x20000", scc=False)]
    o += mk(20, 6, KVB) + mk(16, 4, QB) + mk(24, 8, KVB)
    o += dma_k(cfg, 0) + q_loads(cfg, 0, aQ) + q_loads(cfg, 1, aQ) + dma_v(cfg, 0) + dma_k(cfg, 1)
    o += q_loads(cfg, 2, aQ) + q_loads(cfg, 3, aQ)
    for j in range(1, cfg.D): o += dma_v(cfg, j) + dma_k(cfg, j + 1)
    o += mk(28, 10, QB)
    t4 = V(34)
    o += [salu("s_mov_b32", sC, hex(f2u(c)), scc=False),
          salu("s_mov_b32", sSELLO, "0x05040100", scc=False), salu("s_mov_b32", sSELHI, "0x07060302", scc=False),
          salu("s_mov_b32", sRLO, hex(f2u(2.0 ** -32)), scc=False), salu("s_mov_b32", sRHI, hex(f2u(2.0 ** 32)), scc=False),
          salu("s_mov_b32", sFAIL, 0, scc=False), salu("s_mov_b32", sBIT, 1, scc=False), salu("s_mov_b32", sPASS, 1, scc=False),
          valu("v_lshrrev_b32", t4, 2, t1), valu("v_lshlrev_b32", vK0, 11, t4),
          valu("v_and_b32", t4, 1, t4), valu("v_lshlrev_b32", t4, 1, t4), valu("v_xor_b32", t4, t4, t3),
          valu("v_lshl_add_u32", vK0, t4, 6, vK0), valu("v_lshl_add_u32", vK0, t2, 4, vK0),
          valu("v_add_u32", vK1, "0x10000", vK0),
          valu("v_lshlrev_b32", vV, 4, t1), valu("v_lshl_add_u32", vV, t3, 11, vV), valu("v_add_u32", vV, LDS_V, vV),
          valu("v_add_u32", vKP2, "0x10000", vKP),
          valu("v_lshlrev_b32", vVR, 4, t1), valu("v_add_u32", vVR, sVL, vVR),
          valu("v_lshl_add_u32", vVW, t3, 9, vVR), valu("v_lshl_add_u32", vVR, t3, 2, vVR),
          valu("v_mov_b32", vONE[0], "0x3f803f80")]
    if cfg.sparse1:
        o += [vcmp("v_cmp_eq_u32", "vcc", 0, t1), Ins(f"v_cndmask_b32 {vONE[0]}, 0, {vONE[0]}, vcc", 'valu', ['vcc'] + vONE[0].regs(), vONE[0].regs())]
    o += [valu("v_mov_b32", vONE[i], vONE[0]) for i in range(1, 4)]
    o += proc_k(0, gap=0) + [need("WK0"), barrier()]
    o += [kread(0, f) for f in range(8)]
    return o

STAMP = """  s_memtime s[60:61]
  s_memrealtime s[62:63]
  s_mov_b32 m0, s64
  s_add_u32 s65, s64, 32
  s_waitcnt lgkmcnt(0)
  v_writelane_b32 v0, s60, m0
  s_mov_b32 m0, s65
  s_add_u32 s64, s64, 1
  v_writelane_b32 v0, s62, m0
"""
STAMP_END = f"""  s_load_dwordx2 s[66:67], s[0:1], 40
  s_waitcnt lgkmcnt(0)
  s_mov_b32 s68, s66
  s_and_b32 s69, s67, 0xffff
  s_mov_b32 s70, {WSB}
  s_mov_b32 s71, 0x20000
  s_lshl_b32 s72, s2, 2
  s_add_u32 s72, s72, s32
  s_lshl_b32 s72, s72, 8
  v_mbcnt_lo_u32_b32 v16, -1, 0
  v_mbcnt_hi_u32_b32 v16, -1, v16
  v_lshlrev_b32 v16, 2, v16
  buffer_store_dword v0, v16, s[68:71], s72 offen
"""
def stamp_ins(): return Ins(STAMP.strip(), 'waitall_lg')

def assemble(cfg):
    log = []
    pro = prologue(cfg)
    T1 = Slots(NS); base(T1, False); boundary(cfg, T1, False)
    T0 = Slots(NS); base(T0, True)
    Tb = Slots(NS); base(Tb, False)
    for g in range(NS):
        if T0.mf[g] is not None and T0.mf[g].tag: T0.mf[g] = None
        T0.nv[g] = [i for i in T0.nv[g] if not i.tag]; T0.va[g] = [i for i in T0.va[g] if not i.tag]
        if g >= 11 * PER:
            T0.nv[g] += T1.nv[g][len(Tb.nv[g]):]; T0.va[g] += T1.va[g][len(Tb.va[g]):]
    T0.wrap = False
    loader(cfg, T0)
    p0 = T0.linear(period=PER)
    body = T1.linear(period=PER) + [salu("s_add_u32", sPASS, sPASS, 1), salu("s_cmp_le_u32", None, sPASS, 5), raw("s_cbranch_scc1 L_loop", rd=['scc'])]
    tail = T1.linear(keep=lambda i: i.tag == 'prev')
    po, st = process(pro, strict=True, log=None)
    t = st.t
    p0o, st = process(p0, st, strict=cfg.strict, log=log)
    print(f"; pass0 est cycles {st.t - t}", file=sys.stderr)
    for l in log[:12]: print(";  p0:", l, file=sys.stderr)
    st_after0 = st.copy()
    b1, st1 = process(body, st.copy(), strict=cfg.strict)
    log = []
    b2, st2 = process(body, st1.copy(), strict=cfg.strict, log=log)
    for l in log[:12]: print(";  loop:", l, file=sys.stderr)
    assert len(b1) == len(b2), (len(b1), len(b2))
    bb = []
    import re
    for x, y in zip(b1, b2):
        if x.text != y.text:
            assert x.kind == 'wait' and y.kind == 'wait', (x.text, y.text)
            d = {}
            for tx in (x.text, y.text):
                for nm, n in re.findall(r'(\w+cnt)\((\d+)\)', tx): d[nm] = min(d.get(nm, 99), int(n))
            y = Ins("s_waitcnt " + " ".join(f"{k}({v})" for k, v in d.items()), 'wait')
        bb.append(y)
    print(f"; loop est cycles {st2.t - st1.t}, instrs {len(bb)}, waits {sum(1 for i in bb if i.kind=='wait')}, nops {sum(1 for i in bb if i.kind=='nop')}", file=sys.stderr)
    to, st3 = process(tail, st2.copy(), strict=cfg.strict)
    print(f"; tail est cycles {st3.t - st2.t}", file=sys.stderr)
    txt = header(256, 256, 163840)
    if cfg.stamp: txt += "  s_memtime s[56:57]\n  s_memrealtime s[58:59]\n  s_mov_b32 s64, 1\n"
    txt += render(po)
    if cfg.stamp: txt += "  v_writelane_b32 v0, s56, 0\n  v_writelane_b32 v0, s58, 32\n" + STAMP
    txt += render(p0o)
    txt += ".p2align 3\nL_loop:\n" + (STAMP if cfg.stamp else "") + render(bb)
    if cfg.stamp: txt += STAMP
    txt += render(to)
    if cfg.stamp: txt += STAMP + "  s_waitcnt vmcnt(0)\n" + STAMP + STAMP_END
    txt += "L_end:\n  s_endpgm\n"
    txt += footer(512, 256, 102)
    return txt

if __name__ == "__main__":
    cfg = Cfg()
    out = sys.argv[1] if len(sys.argv) > 1 else "k2.s"
    for kv in sys.argv[2:]:
        k, v = kv.split("=")
        cur = getattr(cfg, k)
        setattr(cfg, k, type(cur)(v) if not isinstance(cur, bool) else v == "1")
    open(out, "w").write(assemble(cfg))
```
